```python
import torch

def _softmax(x, axis=-1):
    return torch.softmax(x, dim=axis)
def _gelu(x):
    return torch.nn.functional.gelu(x, approximate="tanh")
def _silu(x):
    return torch.nn.functional.silu(x)
def _sigmoid(x):
    return torch.sigmoid(x)
def _layernorm(x, axis=-1, eps=1e-5):
    m = x.mean(dim=axis, keepdim=True)
    v = x.var(dim=axis, keepdim=True, unbiased=False)
    return (x - m) / torch.sqrt(v + eps)
def _scatter_add(tgt, idx, src, axis=0):
    return tgt.clone().index_add_(axis, idx, src)
def _segment_sum(src, seg, n):
    out = torch.zeros((n,) + src.shape[1:], dtype=src.dtype)
    return out.index_add_(0, seg, src)
def _pad(x, pw):
    flat = tuple(v for pair in reversed(pw) for v in pair)
    return torch.nn.functional.pad(x, flat)

kernel_name = 'parallel_sum__ssm_conv_s5__glu_gated_swiglu__prompt'

def setup_inputs():

    _w = (lambda a: (lambda t: t.to(torch.bfloat16) if t.is_floating_point() else t)(torch.as_tensor(a)))
    def _A_setup():
        B, S, D = 1, 2048, 512
        P = D
        Lambda_re = -0.5 * (lambda _x: torch.exp(torch.as_tensor(_x)))((lambda *s: torch.randn(*s, dtype=torch.bfloat16) * 0.2)(P))
        Lambda_im = (lambda *s: torch.randn(*s, dtype=torch.bfloat16) * 0.8)(P) * 1.0
        B_re = (lambda *s: torch.randn(*s, dtype=torch.bfloat16) * 0.2)(P, D) * (D ** -0.5)
        B_im = (lambda *s: torch.randn(*s, dtype=torch.bfloat16) * 0.2)(P, D) * (D ** -0.5)
        C_re = (lambda *s: torch.randn(*s, dtype=torch.bfloat16) * 0.2)(D, P) * (P ** -0.5)
        C_im = (lambda *s: torch.randn(*s, dtype=torch.bfloat16) * 0.2)(D, P) * (P ** -0.5)
        log_dt = (lambda *s: torch.randn(*s, dtype=torch.bfloat16) * 0.2)(P) * 0.3 - 2.0
        Dskip = (lambda *s: torch.randn(*s, dtype=torch.bfloat16) * 0.05)(D)
        return {
            "x": _w((lambda *s: torch.randn(*s, dtype=torch.bfloat16) * 0.05)(B, S, D)),
            "Lambda_re": _w(Lambda_re),
            "Lambda_im": _w(Lambda_im),
            "B_re": _w(B_re),
            "B_im": _w(B_im),
            "C_re": _w(C_re),
            "C_im": _w(C_im),
            "log_dt": _w(log_dt),
            "Dskip": _w(Dskip),
        }
    _A_in = _A_setup()

    def _B_setup():
        B, S, D, F = 1, 2048, 512, 1792
        return {
            "x": _w((lambda *s: torch.randn(*s, dtype=torch.bfloat16) * 0.05)(B, S, D)),
            "w1": _w((lambda *s: torch.randn(*s, dtype=torch.bfloat16) * 0.4)(D, F) * (2.0 / D) ** 0.5),
            "w3": _w((lambda *s: torch.randn(*s, dtype=torch.bfloat16) * 0.4)(D, F) * (2.0 / D) ** 0.5),
            "w2": _w((lambda *s: torch.randn(*s, dtype=torch.bfloat16) * 0.4)(F, D) * (2.0 / F) ** 0.5),
        }
    _B_in = _B_setup()

    return {
        "A_x": _A_in["x"],
        "A_Lambda_re": _A_in["Lambda_re"],
        "A_Lambda_im": _A_in["Lambda_im"],
        "A_B_re": _A_in["B_re"],
        "A_B_im": _A_in["B_im"],
        "A_C_re": _A_in["C_re"],
        "A_C_im": _A_in["C_im"],
        "A_log_dt": _A_in["log_dt"],
        "A_Dskip": _A_in["Dskip"],
        "B_x": _B_in["x"],
        "B_w1": _B_in["w1"],
        "B_w3": _B_in["w3"],
        "B_w2": _B_in["w2"],
    }

def reference(A_x, A_Lambda_re, A_Lambda_im, A_B_re, A_B_im, A_C_re, A_C_im, A_log_dt, A_Dskip, B_x, B_w1, B_w3, B_w2):
    def _A_ref(x, Lambda_re, Lambda_im, B_re, B_im, C_re, C_im, log_dt, Dskip):
        Bsz, L, H = x.shape
        Lam = Lambda_re + 1j * Lambda_im
        Bmat = B_re + 1j * B_im
        Cmat = C_re + 1j * C_im
        dt = torch.exp(log_dt)
        Lam_bar = torch.exp(dt * Lam)
        B_bar = ((Lam_bar - 1.0) / Lam)[:, None] * Bmat
        Bu = torch.einsum("bld,pd->blp", x + 0j, B_bar)
        h = torch.zeros_like(Bu[:, 0, :])
        hs = []
        for t in range(L):
            h = Lam_bar[None, :] * h + Bu[:, t, :]
            hs.append(h)
        hseq = torch.stack(hs, 1)
        y = 2.0 * torch.einsum("blp,dp->bld", hseq, Cmat).real + x * Dskip[None, None, :]
        return y

    def _B_ref(x, w1, w3, w2):
        gate = torch.einsum("bsd,df->bsf", x, w1)
        up = torch.einsum("bsd,df->bsf", x, w3)
        h = _silu(gate) * up
        out = torch.einsum("bsf,fd->bsd", h, w2)
        return out

    x = A_x
    xn = _layernorm(x, axis=-1)
    return x + _A_ref(xn, A_Lambda_re, A_Lambda_im, A_B_re, A_B_im, A_C_re, A_C_im, A_log_dt, A_Dskip) + _B_ref(xn, B_w1, B_w3, B_w2)
```

```python
class Asm:
    def __init__(self):
        self.lines = []
        self.vm = []
        self.lg = []
    def __call__(self, s):
        for ln in s.strip("\n").split("\n"):
            self.lines.append("  " + ln.strip())
    def label(self, name):
        self.lines.append(name + ":")
    def comment(self, s):
        self.lines.append("  ; " + s)
    def vmem(self, s, tag):
        self(s); self.vm.append(tag)
    def vm_wait(self, tag, extra=""):
        idx = max(i for i, t in enumerate(self.vm) if t == tag)
        n = len(self.vm) - 1 - idx
        assert n <= 63, n
        self("s_waitcnt vmcnt(%d)%s" % (n, extra))
        return n
    def vm_count_after(self, tag):
        idx = max(i for i, t in enumerate(self.vm) if t == tag)
        return len(self.vm) - 1 - idx
    def lds(self, s, tag):
        self(s); self.lg.append(tag)
    def lg_wait(self, tag):
        idx = max(i for i, t in enumerate(self.lg) if t == tag)
        n = len(self.lg) - 1 - idx
        assert n <= 15, n
        self("s_waitcnt lgkmcnt(%d)" % n)
    def nop(self, n):
        while n > 0:
            k = min(n, 16)
            self("s_nop %d" % (k - 1)); n -= k
    def text(self):
        return "\n".join(self.lines) + "\n"

def kernel_wrap(name, body, vgpr, accum, sgpr=96):
    return f""".text
.globl {name}
.p2align 8
.type {name},@function
{name}:
{body}
.section .rodata,"a"
.p2align 6
.amdhsa_kernel {name}
  .amdhsa_next_free_vgpr {vgpr}
  .amdhsa_next_free_sgpr {sgpr}
  .amdhsa_accum_offset {accum}
  .amdhsa_group_segment_fixed_size 0
  .amdhsa_kernarg_size 128
  .amdhsa_user_sgpr_count 2
  .amdhsa_user_sgpr_kernarg_segment_ptr 1
  .amdhsa_system_sgpr_workgroup_id_x 1
  .amdhsa_float_denorm_mode_32 3
.end_amdhsa_kernel
"""
```

```python
from asmlib import *
from layout import *
import struct

XR_SLOT = 16384
SR_BASE = 65536; SR_SLOT = 8192
FS = 28800; W3OFF = 14336 + 128
F_SLOT = [98304, 98304+FS, 0, FS, 2*FS]
F_OF = [0,1,2,3,4,0,1,2]
MISC = 98304 + 2*FS
HST = 86400
SEG = MISC
STATL = MISC + 2048
LDS_B = 163840
LOG2E = 1.4426950408889634
def f2u(f): return struct.unpack("<I", struct.pack("<f", f))[0]
def hx(f): return hex(f2u(f))


def gen_kernel_b(opts=None):
    a = Asm()
    a("""
    s_cmp_ge_u32 s2, 256
    s_cbranch_scc1 LB_done
    s_load_dwordx16 s[64:79], s[0:1], 0
    s_load_dwordx16 s[80:95], s[0:1], 64
    v_lshrrev_b32 v1, 6, v0
    v_and_b32 v0, 63, v0
    s_and_b32 s3, s2, 7
    s_lshr_b32 s4, s2, 3
    v_readfirstlane_b32 s44, v1
    s_and_b32 s46, s3, 1
    s_lshl_b32 s46, s46, 3
    s_and_b32 s5, s4, 7
    s_add_u32 s46, s46, s5
    s_lshr_b32 s47, s3, 1
    s_lshl_b32 s47, s47, 2
    s_lshr_b32 s5, s4, 3
    s_add_u32 s47, s47, s5
    s_and_b32 s45, s44, 3
    s_waitcnt lgkmcnt(0)
    """)
    a(f"""
    s_mov_b32 s8, s64
    s_and_b32 s9, s65, 0xffff
    s_mov_b32 s10, {L*D*2}
    s_mov_b32 s11, 0x20000
    s_mov_b32 s20, s94
    s_and_b32 s21, s95, 0xffff
    s_mov_b32 s22, {WS_END}
    s_mov_b32 s23, 0x20000
    s_mov_b32 s24, s88
    s_and_b32 s25, s89, 0xffff
    s_mov_b32 s26, {F*D*2}
    s_mov_b32 s27, 0x20000
    s_add_u32 s28, s94, {WS_E}
    s_addc_u32 s29, s95, 0
    s_and_b32 s29, s29, 0xffff
    s_mov_b32 s30, {16*512*8}
    s_mov_b32 s31, 0x20000
    s_cmp_lt_u32 s44, 4
    s_cselect_b32 s12, s70, s72
    s_cselect_b32 s13, s71, s73
    s_and_b32 s13, s13, 0xffff
    s_mov_b32 s14, {P*D*2}
    s_mov_b32 s15, 0x20000
    s_cmp_lt_u32 s45, 2
    s_cselect_b32 s16, s84, s86
    s_cselect_b32 s17, s85, s87
    s_and_b32 s17, s17, 0xffff
    s_mov_b32 s18, {D*F*2}
    s_mov_b32 s19, 0x20000
    """)
    a("""
    v_and_b32 v1, 31, v0
    v_lshrrev_b32 v2, 5, v0
    v_bfe_u32 v3, v1, 2, 1
    v_lshlrev_b32 v3, 4, v3
    v_lshrrev_b32 v4, 3, v1
    v_lshl_add_u32 v3, v4, 2, v3
    v_and_b32 v4, 3, v1
    v_add_u32 v3, v3, v4
    """)
    a("""
    v_lshrrev_b32 v7, 3, v0
    v_lshrrev_b32 v8, 4, v0
    v_and_b32 v9, 7, v0
    v_xor_b32 v10, v9, v8
    v_xor_b32 v11, 4, v10
    s_lshl_b32 s5, s46, 7
    s_lshl_b32 s6, s44, 4
    s_add_u32 s5, s5, s6
    v_add_u32 v12, s5, v7
    v_lshlrev_b32 v12, 10, v12
    v_lshl_add_u32 v4, v10, 4, v12
    v_lshl_add_u32 v5, v11, 4, v12
    v_add_u32 v5, 0x2000, v5
    s_and_b32 s5, s44, 1
    s_lshl_b32 s5, s5, 2
    v_xor_b32 v10, s5, v10
    s_lshl_b32 s5, s47, 5
    s_lshl_b32 s6, s45, 3
    s_add_u32 s5, s5, s6
    v_add_u32 v12, s5, v7
    v_lshlrev_b32 v12, 10, v12
    v_lshl_add_u32 v6, v10, 4, v12
    """)
    for c in range(8):
        a("s_mov_b32 s%d, %d" % (48+c, c*128))
    a(f"""
    s_lshl_b32 s56, s44, 11
    s_lshl_b32 s57, s44, 10
    s_add_u32 s57, s57, {SR_BASE}
    s_mov_b32 s58, 0x3f803f80
    """)
    a(f"""
    s_mul_i32 s5, s47, 112
    s_lshl_b32 s6, s44, 4
    s_add_u32 s5, s5, s6
    v_lshrrev_b32 v7, 2, v0
    v_add_u32 v7, s5, v7
    v_lshlrev_b32 v7, 10, v7
    v_and_b32 v8, 3, v0
    v_lshl_add_u32 v7, v8, 4, v7
    s_lshl_b32 s5, s46, 6
    v_add_u32 v7, s5, v7
    s_lshl_b32 s5, s44, 10
    s_add_u32 s5, s5, {MISC}
    s_mov_b32 m0, s5
    s_cmp_ge_u32 s44, 7
    s_cbranch_scc1 LB_skipw2
    buffer_load_dwordx4 v7, s[24:27], 0 offen lds
    """)
    a.label("LB_skipw2")
    a(f"""
    s_lshl_b32 s61, s46, 2
    s_add_u32 s61, s61, s45
    s_mul_i32 s61, s61, {RB_STRIDE}
    s_cmp_ge_u32 s44, 4
    s_cbranch_scc1 LB_c1
    """)
    b0 = Asm(); pre0(b0); path_common(b0); path0(b0)
    b1 = Asm(); pre1(b1); path_common(b1); path1(b1)
    a.lines += b0.lines
    a.label("LB_c1")
    a.lines += b1.lines
    a.label("LB_done")
    a("s_endpgm")
    return kernel_wrap("phase_b_kernel", a.text(), 256, 128, sgpr=100)

def issue_xs(a, c):
    slot = c % 4
    a("s_add_u32 m0, s56, %d" % (slot*XR_SLOT))
    a("s_nop 0")
    a.vmem("buffer_load_dwordx4 v4, s[8:11], s%d offen lds" % (48+c), ("xs", c))
    a("s_add_u32 m0, s56, %d" % (slot*XR_SLOT + 1024))
    a("s_nop 0")
    a.vmem("buffer_load_dwordx4 v5, s[8:11], s%d offen lds" % (48+c), ("xs", c))
    a("s_add_u32 m0, s57, %d" % (slot*SR_SLOT))
    a("s_nop 0")
    a.vmem("buffer_load_dwordx4 v6, s[12:15], s%d offen lds" % (48+c), ("xs", c))

def pre0(a):
    a("""
    s_lshl_b32 s5, s47, 5
    v_add_u32 v60, s5, v1
    v_lshlrev_b32 v60, 1, v60
    """)
    a.vmem("global_load_ushort v61, v60, s[66:67]", "lam")
    a.vmem("global_load_ushort v62, v60, s[68:69]", "lam")
    a.vmem("global_load_ushort v63, v60, s[78:79]", "lam")

def pre1(a):
    a("""
    s_lshl_b32 s5, s46, 5
    v_add_u32 v20, s5, v1
    v_lshlrev_b32 v20, 10, v20
    v_lshl_add_u32 v20, v2, 4, v20
    s_lshl_b32 s5, s47, 6
    s_and_b32 s6, s45, 1
    s_lshl_b32 s6, s6, 5
    s_add_u32 s5, s5, s6
    v_add_u32 v20, s5, v20
    s_cmp_lt_u32 s45, 2
    s_cselect_b32 s6, s74, s76
    s_cselect_b32 s7, s75, s77
    """)
    a.vmem("global_load_dwordx4 v[24:27], v20, s[6:7]", "cjob")

def path_common(a):
    for ch in range(4):
        issue_xs(a, ch)
    a("""
    s_lshl_b32 s5, s45, 5
    v_add_u32 v7, s5, v3
    v_bfe_u32 v12, v7, 1, 3
    v_xor_b32 v12, v12, v2
    v_lshlrev_b32 v12, 4, v12
    v_lshl_add_u32 v8, v7, 7, v12
    v_xor_b32 v9, 32, v8
    v_xor_b32 v10, 64, v8
    v_xor_b32 v11, 96, v8
    """)

def w2_side(a, t0, t1, fr, tag):
    a(f"""
    s_cmp_ge_u32 s44, 7
    s_cbranch_scc1 LB_skipw2b_{tag}
    v_bfe_u32 v{t0}, v0, 2, 2
    v_lshl_add_u32 v{t0}, v2, 2, v{t0}
    v_lshlrev_b32 v{t0}, 6, v{t0}
    v_bfe_u32 v{t1}, v0, 4, 1
    v_lshl_add_u32 v{t0}, v{t1}, 5, v{t0}
    v_and_b32 v{t1}, 3, v0
    v_lshl_add_u32 v{t0}, v{t1}, 3, v{t0}
    s_lshl_b32 s5, s44, 10
    s_add_u32 s5, s5, {MISC}
    v_add_u32 v{t0}, s5, v{t0}
    ds_read_b64_tr_b16 v[{fr}:{fr+1}], v{t0}
    ds_read_b64_tr_b16 v[{fr+2}:{fr+3}], v{t0} offset:512
    s_mul_i32 s5, s46, {RB_STRIDE}
    s_mul_i32 s6, s47, 7
    s_add_u32 s6, s6, s44
    s_lshl_b32 s6, s6, 10
    s_add_u32 s5, s5, s6
    s_add_u32 s5, s5, {WS_B}
    v_lshlrev_b32 v{t1}, 4, v0
    s_waitcnt lgkmcnt(0)
    buffer_store_dwordx4 v[{fr}:{fr+3}], v{t1}, s[20:23], s5 offen
    """)
    a.label(f"LB_skipw2b_{tag}")

def stats_finish(a, vs, vq, t):
    a(f"""
    v_mov_b32 v{t}, v{vs}
    v_mov_b32 v{t+1}, v{vq}
    s_nop 1
    v_permlane32_swap_b32 v{vs}, v{t}
    v_permlane32_swap_b32 v{vq}, v{t+1}
    s_nop 1
    v_add_f32 v{vs}, v{vs}, v{t}
    v_add_f32 v{vq}, v{vq}, v{t+1}
    v_mul_f32 v{vs}, 0x3b000000, v{vs}
    v_mul_f32 v{vq}, 0x3b000000, v{vq}
    v_fma_f32 v{vq}, -v{vs}, v{vs}, v{vq}
    v_max_f32 v{vq}, 0, v{vq}
    v_cvt_pk_bf16_f32 v{t}, v{vs}, v{vq}
    v_lshlrev_b32 v{vs}, 16, v{t}
    v_and_b32 v{vq}, 0xffff0000, v{t}
    v_add_f32 v{vq}, 0x3727c5ac, v{vq}
    v_cvt_pk_bf16_f32 v{t}, v{vq}, v{vq}
    v_and_b32 v{vq}, 0xffff0000, v{t}
    v_sqrt_f32 v{vq}, v{vq}
    s_nop 0
    v_cvt_pk_bf16_f32 v{t}, v{vq}, v{vq}
    v_and_b32 v{vq}, 0xffff0000, v{t}
    v_rcp_f32 v{vq}, v{vq}
    s_nop 0
    """)

def split3(a, vs, t, out):
    a(f"""
    v_mov_b32 v{t}, v{vs}
    s_nop 1
    v_permlane32_swap_b32 v{vs}, v{t}
    s_nop 1
    v_add_f32 v{vs}, v{vs}, v{t}
    v_cvt_pk_bf16_f32 v{t}, v{vs}, v{vs}
    v_and_b32 v{t+1}, 0xffff0000, v{t}
    v_sub_f32 v{vs}, v{vs}, v{t+1}
    v_cvt_pk_bf16_f32 v{t+2}, v{vs}, v{vs}
    v_and_b32 v{t+2}, 0xffff0000, v{t+2}
    v_sub_f32 v{vs}, v{vs}, v{t+2}
    v_lshrrev_b32 v{t+1}, 16, v{t+1}
    v_or_b32 v{out}, v{t+1}, v{t+2}
    v_cvt_pk_bf16_f32 v{out+1}, v{vs}, v{vs}
    v_and_b32 v{out+1}, 0xffff, v{out+1}
    v_mov_b32 v{out+2}, 0
    v_mov_b32 v{out+3}, 0
    s_nop 1
    """)

def xaug(a, VM, out):
    a(f"""
    v_xor_b32 v{out}, 0x80000000, v{VM}
    v_lshrrev_b32 v{out+1}, 16, v{out}
    v_and_b32 v{out}, 0xffff0000, v{out}
    v_or_b32 v{out}, v{out}, v{out+1}
    v_cmp_gt_u32 vcc, 32, v0
    s_nop 1
    v_cndmask_b32 v{out}, 0, v{out}, vcc
    v_cndmask_b32 v{out+1}, 0, v{out+1}, vcc
    v_mov_b32 v{out+2}, 0
    v_mov_b32 v{out+3}, 0
    """)

def ffn_epilogue(a, acc, k1, k2, t, outr):
    for j in range(0, 8, 2):
        for e in range(2):
            g = acc + j + e; u = acc + 8 + j + e; z = t + e*2; pz = t + e*2 + 1
            a(f"""
            v_mul_f32 v{z}, v{g}, v{k1}
            v_exp_f32 v{z}, v{z}
            v_mul_f32 v{pz}, v{g}, v{u}
            v_add_f32 v{z}, 1.0, v{z}
            v_rcp_f32 v{z}, v{z}
            v_mul_f32 v{pz}, v{pz}, v{k2}
            v_mul_f32 v{pz}, v{pz}, v{z}
            """)
        a(f"v_cvt_pk_bf16_f32 v{outr + j//2}, v{t+1}, v{t+3}")

def phase2_stream(a, tiles, accs, wbufs, csum, vaddr, vbase, hooks, avail):
    items = [(ch, s, ti) for ch in range(8) for s in range(4) for ti in range(len(tiles))]
    NB = len(wbufs); AH = NB - 1
    per = 4*len(tiles)
    cur = [None]
    def rd(n):
        ch, s, ti = items[n]
        if cur[0] != ch:
            a("v_add_u32 v%d, %d, v%d" % (vaddr, F_SLOT[F_OF[ch]], vbase))
            cur[0] = ch
        b = wbufs[n % NB]
        off = s*3584 + tiles[ti]*32
        a.lds("ds_read_b64_tr_b16 v[%d:%d], v%d offset:%d" % (b, b+1, vaddr, off), ("w", n))
        a.lds("ds_read_b64_tr_b16 v[%d:%d], v%d offset:%d" % (b+2, b+3, vaddr, off+896), ("w", n))
    nread = 0
    for n, (ch, s, ti) in enumerate(items):
        if (ch, n % per) in hooks:
            hooks[(ch, n % per)]()
        while nread < len(items) and nread <= n + AH and items[nread][0] <= avail[0]:
            rd(nread); nread += 1
        a.lg_wait(("w", n))
        b = wbufs[n % NB]
        x = ch*16 + s*4
        ac = accs[ti]
        a("v_mfma_f32_32x32x16_bf16 v[%d:%d], v[%d:%d], a[%d:%d], v[%d:%d]" % (ac, ac+15, b, b+3, x, x+3, ac, ac+15))
        for q in range(4):
            a("v_dot2c_f32_bf16 v%d, s58, v%d" % (csum[ti], b+q))

def issue_f(a, ch, foffs):
    base = F_SLOT[F_OF[ch]]
    a("s_mov_b32 s60, %d" % (ch*64*3584))
    for e in range(7):
        a("s_add_u32 m0, s59, %d" % (base + e*1024))
        a("s_nop 0")
        a.vmem("buffer_load_dwordx4 v%d, s[16:19], s60 offen lds" % foffs[e], ("f", ch))

def tr_base(a, vb, t):
    a(f"""
    v_bfe_u32 v{t}, v0, 2, 2
    v_lshl_add_u32 v{t}, v2, 3, v{t}
    v_mul_u32_u24 v{vb}, 224, v{t}
    v_and_b32 v{t}, 3, v0
    v_lshl_add_u32 v{vb}, v{t}, 3, v{vb}
    v_bfe_u32 v{t}, v0, 4, 1
    v_mul_u32_u24 v{t}, {W3OFF}, v{t}
    v_add_u32 v{vb}, v{vb}, v{t}
    """)

def cmul(a, dr, di, ar, ai, br, bi, t):
    a(f"""
    v_mul_f32 v{t}, v{ar}, v{br}
    v_mul_f32 v{t+1}, v{ar}, v{bi}
    v_fma_f32 v{t}, -v{ai}, v{bi}, v{t}
    v_fma_f32 v{di}, v{ai}, v{br}, v{t+1}
    v_mov_b32 v{dr}, v{t}
    """)

def cmul_safe(a, dr, di, ar, ai, br, bi, t):
    a(f"""
    v_mul_f32 v{t}, v{ar}, v{br}
    v_mul_f32 v{t+1}, v{ar}, v{bi}
    v_fma_f32 v{t}, -v{ai}, v{bi}, v{t}
    v_fma_f32 v{t+1}, v{ai}, v{br}, v{t+1}
    v_mov_b32 v{dr}, v{t}
    v_mov_b32 v{di}, v{t+1}
    """)

def cfma(a, dr, di, ar, ai, br, bi, cr, ci, t):
    a(f"""
    v_fma_f32 v{t}, v{ar}, v{br}, v{cr}
    v_fma_f32 v{t+1}, v{ar}, v{bi}, v{ci}
    v_fma_f32 v{t}, -v{ai}, v{bi}, v{t}
    v_fma_f32 v{di}, v{ai}, v{br}, v{t+1}
    v_mov_b32 v{dr}, v{t}
    """)

def path1(a):
    ACC = [48 + 16*i for i in range(5)]
    FO = list(range(12, 19))
    WB = [20, 24, 28, 32]
    CS = [36, 37, 38, 39, 40]
    VB, VA = 41, 42
    VM, VRS, K1, K2 = 44, 45, 46, 47
    a("""
    s_and_b32 s5, s45, 1
    s_mul_i32 s5, s5, 448
    s_mul_i32 s6, s47, 224
    s_mov_b32 s7, 0x12492493
    """)
    for e in range(7):
        a(f"""
        v_add_u32 v36, s5, v0
        v_add_u32 v36, {e*64}, v36
        v_mul_hi_u32 v37, v36, s7
        v_mul_u32_u24 v38, 14, v37
        v_sub_u32 v38, v36, v38
        v_mul_u32_u24 v37, 3584, v37
        v_lshl_add_u32 v37, v38, 4, v37
        v_add_u32 v{FO[e]}, s6, v37
        """)
    a(f"""
    s_lshr_b32 s59, s45, 1
    s_mul_i32 s59, s59, {W3OFF}
    s_and_b32 s5, s45, 1
    s_mul_i32 s5, s5, 7168
    s_add_u32 s59, s59, s5
    """)
    tr_base(a, VB, 36)
    for r in range(80):
        a("v_mov_b32 v%d, 0" % (48+r))
    for r in CS:
        a("v_mov_b32 v%d, 0" % r)
    for ch in range(8):
        a.vm_wait(("xs", ch))
        a("s_barrier")
        if ch == 0:
            a.vm_wait("cjob")
            a(f"""
            s_mul_i32 s5, s46, {RB_STRIDE}
            s_lshr_b32 s6, s45, 1
            s_lshl_b32 s6, s6, 5
            s_add_u32 s6, s6, 112
            s_lshl_b32 s7, s47, 1
            s_add_u32 s6, s6, s7
            s_and_b32 s7, s45, 1
            s_add_u32 s6, s6, s7
            s_lshl_b32 s6, s6, 10
            s_add_u32 s5, s5, s6
            s_add_u32 s5, s5, {WS_B}
            v_lshlrev_b32 v20, 4, v0
            """)
            a.vmem("buffer_store_dwordx4 v[24:27], v20, s[20:23], s5 offen", "cst")
            w2_side(a, 28, 29, 32, "c1")
        if 1 <= ch <= 4: issue_xs(a, ch+3)
        if ch == 5: issue_f(a, 0, FO); issue_f(a, 1, FO)
        if ch == 6: issue_f(a, 2, FO)
        for s in range(4):
            x = ch*16 + s*4
            a("ds_read_b128 a[%d:%d], v%d offset:%d" % (x, x+3, 8+s, (ch%4)*XR_SLOT))
        a("s_waitcnt lgkmcnt(0)")
    hooks = {}; avail = [-1]
    def mk(b):
        def f():
            a.vm_wait(("f", b))
            a("s_barrier")
            avail[0] = b
            if b == 0: issue_f(a, 3, FO); issue_f(a, 4, FO)
            if b in (2, 3, 4): issue_f(a, b+3, FO)
        return f
    hooks[(0, 0)] = mk(0)
    for b in range(1, 8):
        hooks[(b-1, 10)] = mk(b)
    phase2_stream(a, [2,3,4,5,6], ACC, WB, CS, VA, VB, hooks, avail)
    a(f"""
    s_lshl_b32 s5, s45, 5
    v_add_u32 v20, s5, v3
    v_lshlrev_b32 v20, 3, v20
    v_add_u32 v20, {STATL}, v20
    ds_read_b64 v[{VM}:{VRS}], v20
    s_waitcnt lgkmcnt(0)
    """)
    xaug(a, VM, 20)
    for i in range(5):
        split3(a, CS[i], 28, 24)
        a("v_mfma_f32_32x32x16_bf16 v[%d:%d], v[24:27], v[20:23], v[%d:%d]" % (ACC[i], ACC[i]+15, ACC[i], ACC[i]+15))
    a(f"""
    v_mul_f32 v{K1}, {hx(-LOG2E)}, v{VRS}
    v_mul_f32 v{K2}, v{VRS}, v{VRS}
    v_lshlrev_b32 v19, 4, v0
    s_mul_i32 s6, s47, 7168
    s_add_u32 s5, s61, s6
    """)
    a.nop(12)
    for i in range(5):
        outr = 28 + 4*(i % 2)
        ffn_epilogue(a, ACC[i], K1, K2, 36, outr)
        a("s_add_u32 s6, s5, %d" % ((2+i)*1024))
        a("buffer_store_dwordx4 v[%d:%d], v19, s[20:23], s6 offen" % (outr, outr+3))
    a("s_endpgm")

def path0(a):
    RE, IM = 96, 112
    ACC = [64, 80]
    WB = [16, 20, 24, 28]
    CS = [12, 13]
    BS = [14, 15]
    SUM, SQ = 32, 33
    LR, LI, L16R, L16I, L128R, L128I, CR2, CI2, LSR, LSI, CINR, CINI = range(34, 46)
    VB, VA = 46, 47
    AS = [48, 49, 50, 51]
    XT = [52, 56]
    ST = [16, 20, 24, 28]
    a(f"""
    v_bfe_u32 v12, v1, 1, 3
    v_xor_b32 v12, v12, v2
    v_lshlrev_b32 v12, 4, v12
    v_lshl_add_u32 v{AS[0]}, v1, 7, v12
    v_add_u32 v{AS[0]}, {SR_BASE}, v{AS[0]}
    v_xor_b32 v{AS[1]}, 32, v{AS[0]}
    v_xor_b32 v{AS[2]}, 64, v{AS[0]}
    v_xor_b32 v{AS[3]}, 96, v{AS[0]}
    """)
    tr_base(a, VB, 12)
    for r in list(range(64, 128)) + CS + BS + [SUM, SQ]:
        a("v_mov_b32 v%d, 0" % r)
    def constants():
        a(f"""
        v_lshlrev_b32 v61, 16, v61
        v_lshlrev_b32 v62, 16, v62
        v_lshlrev_b32 v63, 16, v63
        v_mul_f32 v63, {hx(LOG2E)}, v63
        v_exp_f32 v63, v63
        s_nop 0
        v_cvt_pk_bf16_f32 v63, v63, v63
        v_and_b32 v63, 0xffff0000, v63
        v_mul_f32 v{LSR}, v63, v61
        v_mul_f32 v{LSI}, v63, v62
        v_mul_f32 v{LSR}, {hx(LOG2E)}, v{LSR}
        v_exp_f32 v{LSR}, v{LSR}
        v_mul_f32 v{LSI}, 0.15915494, v{LSI}
        v_fract_f32 v{LSI}, v{LSI}
        v_cos_f32 v{CINR}, v{LSI}
        v_sin_f32 v{CINI}, v{LSI}
        s_nop 0
        v_mul_f32 v{LR}, v{LSR}, v{CINR}
        v_mul_f32 v{LI}, v{LSR}, v{CINI}
        v_add_f32 v{LSR}, -1.0, v{LR}
        v_mul_f32 v{LSI}, v61, v61
        v_fma_f32 v{LSI}, v62, v62, v{LSI}
        v_rcp_f32 v{LSI}, v{LSI}
        v_mul_f32 v{CINR}, v{LSR}, v61
        v_fma_f32 v{CINR}, v{LI}, v62, v{CINR}
        v_mul_f32 v{CINI}, v{LI}, v61
        v_fma_f32 v{CINI}, -v{LSR}, v62, v{CINI}
        v_add_f32 v{LSI}, v{LSI}, v{LSI}
        v_mul_f32 v{CR2}, v{CINR}, v{LSI}
        v_mul_f32 v{CI2}, v{CINI}, v{LSI}
        v_mov_b32 v{L16R}, v{LR}
        v_mov_b32 v{L16I}, v{LI}
        """)
        for _ in range(4): cmul_safe(a, L16R, L16I, L16R, L16I, L16R, L16I, 60)
        a(f"v_mov_b32 v{L128R}, v{L16R}\nv_mov_b32 v{L128I}, v{L16I}")
        for _ in range(3): cmul_safe(a, L128R, L128I, L128R, L128I, L128R, L128I, 60)
        a(f"v_mov_b32 v{LSR}, 1.0\nv_mov_b32 v{LSI}, 0")
        for wv in range(1, 4):
            a("s_cmp_lt_u32 s45, %d" % wv)
            a("s_cbranch_scc1 LB_ls_done")
            cmul_safe(a, LSR, LSI, LSR, LSI, L16R, L16I, 60)
            cmul_safe(a, LSR, LSI, LSR, LSI, L16R, L16I, 60)
        a.label("LB_ls_done")
        cmul_safe(a, 62, 63, LSR, LSI, L16R, L16I, 60)
        a(f"""
        v_cmp_gt_u32 vcc, 32, v0
        s_nop 1
        v_cndmask_b32 v{LSR}, v62, v{LSR}, vcc
        v_cndmask_b32 v{LSI}, v63, v{LSI}, vcc
        """)
    for ch in range(8):
        a.vm_wait(("xs", ch))
        a("s_barrier")
        if ch == 0:
            w2_side(a, 24, 25, 28, "c0")
            a.vm_wait("lam")
            constants()
        if 1 <= ch <= 4: issue_xs(a, ch+3)
        slot = ch % 4
        def rd(s):
            xt = XT[s % 2]; sr = ST[(s % 2)*2]; si = ST[(s % 2)*2+1]
            a.lds("ds_read_b128 v[%d:%d], v%d offset:%d" % (xt, xt+3, 8+s, slot*XR_SLOT), ("p1", ch, s))
            a.lds("ds_read_b128 v[%d:%d], v%d offset:%d" % (sr, sr+3, AS[s], slot*SR_SLOT), ("p1", ch, s))
            a.lds("ds_read_b128 v[%d:%d], v%d offset:%d" % (si, si+3, AS[s], slot*SR_SLOT+4096), ("p1", ch, s))
        rd(0); rd(1)
        for s in range(4):
            a.lg_wait(("p1", ch, s))
            xt = XT[s % 2]; sr = ST[(s % 2)*2]; si = ST[(s % 2)*2+1]
            a("v_mfma_f32_32x32x16_bf16 v[%d:%d], v[%d:%d], v[%d:%d], v[%d:%d]" % (RE, RE+15, xt, xt+3, sr, sr+3, RE, RE+15))
            a("v_mfma_f32_32x32x16_bf16 v[%d:%d], v[%d:%d], v[%d:%d], v[%d:%d]" % (IM, IM+15, xt, xt+3, si, si+3, IM, IM+15))
            x = ch*16 + s*4
            for q in range(4):
                a("v_dot2c_f32_bf16 v%d, s58, v%d" % (SUM, xt+q))
                a("v_dot2c_f32_bf16 v%d, v%d, v%d" % (SQ, xt+q, xt+q))
                a("v_accvgpr_write_b32 a%d, v%d" % (x+q, xt+q))
                a("v_dot2c_f32_bf16 v%d, s58, v%d" % (BS[0], sr+q))
                a("v_dot2c_f32_bf16 v%d, s58, v%d" % (BS[1], si+q))
            if s + 2 < 4: rd(s+2)
    stats_finish(a, SUM, SQ, 48)
    a(f"""
    s_lshl_b32 s5, s45, 5
    v_add_u32 v48, s5, v3
    v_lshlrev_b32 v48, 3, v48
    v_add_u32 v49, {STATL}, v48
    ds_write_b64 v49, v[{SUM}:{SQ}]
    s_cmp_lg_u32 s47, 0
    s_cbranch_scc1 LB_nostat
    s_lshl_b32 s5, s46, 10
    s_add_u32 s5, s5, {WS_STATS}
    buffer_store_dwordx2 v[{SUM}:{SQ}], v48, s[20:23], s5 offen
    """)
    a.label("LB_nostat")
    xaug(a, SUM, 52)
    for (bs, acc) in ((BS[0], RE), (BS[1], IM)):
        split3(a, bs, 48, 56)
        a("v_mfma_f32_32x32x16_bf16 v[%d:%d], v[52:55], v[56:59], v[%d:%d]" % (acc, acc+15, acc, acc+15))
    a(f"""
    s_lshl_b32 s5, s45, 5
    v_lshlrev_b32 v48, 4, v2
    v_add_u32 v48, s5, v48
    v_lshlrev_b32 v48, 3, v48
    v_add_u32 v48, {STATL}, v48
    """)
    for r in range(16):
        a("ds_read_b32 v%d, v48 offset:%d" % (16 + r, r*8 + 4))
    a("s_waitcnt lgkmcnt(0)")
    a.nop(12)
    for r in range(16):
        a("v_mul_f32 v%d, v%d, v%d" % (RE+r, RE+r, 16+r))
        a("v_mul_f32 v%d, v%d, v%d" % (IM+r, IM+r, 16+r))
    GR, GI = 48, 49
    a(f"v_mov_b32 v{GR}, v{RE}\nv_mov_b32 v{GI}, v{IM}")
    for r in range(1, 16):
        cfma(a, GR, GI, LR, LI, GR, GI, RE+r, IM+r, 50)
    a(f"""
    s_lshl_b32 s5, s45, 9
    s_add_u32 s5, s5, {SEG}
    v_lshlrev_b32 v52, 8, v2
    v_lshl_add_u32 v52, v1, 3, v52
    v_add_u32 v52, s5, v52
    ds_write_b64 v52, v[{GR}:{GI}]
    s_waitcnt lgkmcnt(0)
    """)
    hooks = {}; avail = [-1]
    def seg_prefix():
        a(f"v_lshlrev_b32 v7, 3, v1\nv_add_u32 v7, {SEG}, v7")
        for s in range(8):
            a("ds_read_b64 v[%d:%d], v7 offset:%d" % (48+2*s, 49+2*s, s*256))
        a(f"""
        s_lshl_b32 s5, s45, 9
        v_add_u32 v7, s5, v7
        ds_read_b64 v[4:5], v7
        ds_read_b64 v[8:9], v7 offset:256
        s_waitcnt lgkmcnt(0)
        v_mov_b32 v{CINR}, 0
        v_mov_b32 v{CINI}, 0
        """)
        for wv in range(1, 4):
            a("s_cmp_lt_u32 s45, %d" % wv)
            a("s_cbranch_scc1 LB_pref_done")
            for s in (2*wv-2, 2*wv-1):
                cfma(a, CINR, CINI, L16R, L16I, CINR, CINI, 48+2*s, 49+2*s, 10)
        a.label("LB_pref_done")
        cfma(a, 52, 53, L16R, L16I, CINR, CINI, 4, 5, 10)
        cfma(a, 54, 55, L16R, L16I, 52, 53, 8, 9, 10)
        a(f"""
        v_cmp_gt_u32 vcc, 32, v0
        s_nop 1
        v_cndmask_b32 v{CINR}, v52, v{CINR}, vcc
        v_cndmask_b32 v{CINI}, v53, v{CINI}, vcc
        s_cmp_lg_u32 s45, 3
        s_cbranch_scc1 LB_nopub
        s_cmp_eq_u32 s46, 15
        s_cbranch_scc1 LB_nopub
        s_lshl_b32 s5, s46, 12
        s_lshl_b32 s6, s47, 8
        s_add_u32 s5, s5, s6
        v_lshlrev_b32 v7, 3, v1
        s_mov_b32 exec_hi, 0
        buffer_store_dwordx2 v[54:55], v7, s[28:31], s5 offen sc1
        s_waitcnt vmcnt(0)
        s_mov_b32 exec_lo, 1
        s_lshl_b32 s5, s47, 4
        v_mov_b32 v7, s5
        s_lshl_b32 s5, 1, s46
        v_mov_b32 v4, s5
        global_atomic_or v7, v4, s[92:93] sc1
        s_mov_b64 exec, -1
        """)
        a.label("LB_nopub")
    def poll_and_load():
        a(f"""
        s_lshl_b32 s5, 1, s46
        s_sub_u32 s5, s5, 1
        s_lshl_b32 s6, s47, 4
        v_mov_b32 v7, s6
        s_mov_b32 s7, 0
        """)
        a.label("LB_poll")
        a(f"""
        global_load_dword v4, v7, s[92:93] sc1
        s_waitcnt vmcnt(0)
        v_readfirstlane_b32 s6, v4
        s_and_b32 s6, s6, s5
        s_cmp_eq_u32 s6, s5
        s_cbranch_scc1 LB_polled
        s_add_u32 s7, s7, 1
        s_cmp_lt_u32 s7, 0x40000
        s_cbranch_scc0 LB_polled
        s_sleep 1
        s_branch LB_poll
        """)
        a.label("LB_polled")
        a(f"""
        s_sub_u32 s5, s46, 1
        s_lshl_b32 s5, s5, 12
        s_lshl_b32 s6, s47, 8
        s_add_u32 s5, s5, s6
        v_lshlrev_b32 v7, 12, v2
        v_sub_u32 v7, s5, v7
        v_lshl_add_u32 v7, v1, 3, v7
        """)
        for k in range(8):
            a.vmem("buffer_load_dwordx2 v[%d:%d], v7, s[28:31], 0 offen sc1" % (48+2*k, 49+2*k), "eld")
            if k < 7: a("v_subrev_u32 v7, 8192, v7")
    def h(b):
        def f():
            a("s_barrier"); avail[0] = b
            if b == 1: seg_prefix()
            if b == 6: poll_and_load()
        return f
    hooks[(0, 0)] = h(0)
    for b in range(1, 8):
        hooks[(b-1, 4)] = h(b)
    phase2_stream(a, [0, 1], ACC, WB, CS, VA, VB, hooks, avail)
    xaug(a, SUM, 16)
    for i in range(2):
        split3(a, CS[i], 4, 20)
        a("v_mfma_f32_32x32x16_bf16 v[%d:%d], v[20:23], v[16:19], v[%d:%d]" % (ACC[i], ACC[i]+15, ACC[i], ACC[i]+15))
    K1, K2 = 12, 13
    a(f"""
    v_mul_f32 v{K1}, {hx(-LOG2E)}, v{SQ}
    v_mul_f32 v{K2}, v{SQ}, v{SQ}
    v_lshlrev_b32 v14, 4, v0
    s_mul_i32 s6, s47, 7168
    s_add_u32 s5, s61, s6
    """)
    a.nop(12)
    for i in range(2):
        outr = 24 + 4*i
        ffn_epilogue(a, ACC[i], K1, K2, 4, outr)
        a("s_add_u32 s6, s5, %d" % (i*1024))
        a.vmem("buffer_store_dwordx4 v[%d:%d], v14, s[20:23], s6 offen" % (outr, outr+3), "fst")
    a.vm_wait("eld")
    cmul_safe(a, 8, 9, L128R, L128I, L128R, L128I, 4)
    a("v_mov_b32 v10, v62\nv_mov_b32 v11, v63")
    for k in range(6, -1, -1):
        cfma(a, 10, 11, 8, 9, 10, 11, 48+2*k, 49+2*k, 4)
    cmul_safe(a, 6, 7, L128R, L128I, 10, 11, 4)
    a(f"""
    v_cmp_gt_u32 vcc, 32, v0
    s_nop 1
    v_cndmask_b32 v10, v6, v10, vcc
    v_cndmask_b32 v11, v7, v11, vcc
    v_mov_b32 v6, v10
    v_mov_b32 v7, v11
    s_nop 1
    v_permlane32_swap_b32 v10, v6
    v_permlane32_swap_b32 v11, v7
    s_nop 1
    v_add_f32 v10, v10, v6
    v_add_f32 v11, v11, v7
    """)
    cfma(a, CINR, CINI, LSR, LSI, 10, 11, CINR, CINI, 4)
    for r in range(16):
        cfma(a, CINR, CINI, LR, LI, CINR, CINI, RE+r, IM+r, 4)
        a(f"""
        v_mul_f32 v{RE+r}, v{CR2}, v{CINR}
        v_mul_f32 v{IM+r}, -v{CR2}, v{CINI}
        v_fma_f32 v{RE+r}, -v{CI2}, v{CINI}, v{RE+r}
        v_fma_f32 v{IM+r}, -v{CI2}, v{CINR}, v{IM+r}
        """)
    a(f"""
    s_lshl_b32 s5, s45, 11
    s_add_u32 s5, s5, {HST}
    v_lshlrev_b32 v7, 6, v1
    v_lshl_add_u32 v7, v2, 5, v7
    v_add_u32 v7, s5, v7
    v_bfe_u32 v4, v0, 2, 2
    v_lshl_add_u32 v4, v2, 3, v4
    v_lshlrev_b32 v4, 6, v4
    v_and_b32 v5, 1, v0
    v_lshl_add_u32 v4, v5, 5, v4
    v_bfe_u32 v5, v0, 4, 1
    v_lshl_add_u32 v4, v5, 4, v4
    v_bfe_u32 v5, v0, 1, 1
    v_lshl_add_u32 v4, v5, 3, v4
    v_add_u32 v4, s5, v4
    v_lshlrev_b32 v14, 4, v0
    """)
    for part, R in ((0, RE), (1, IM)):
        for q in range(8):
            a("v_cvt_pk_bf16_f32 v%d, v%d, v%d" % (48+q, R+2*q, R+2*q+1))
        a("ds_write_b128 v7, v[48:51]")
        a("ds_write_b128 v7, v[52:55] offset:16")
        a("s_waitcnt lgkmcnt(0)")
        for kb in range(2):
            o = 56 + 4*kb
            a("ds_read_b64_tr_b16 v[%d:%d], v4 offset:%d" % (o, o+1, kb*1024))
            a("ds_read_b64_tr_b16 v[%d:%d], v4 offset:%d" % (o+2, o+3, kb*1024 + 256))
        a("s_waitcnt lgkmcnt(0)")
        for kb in range(2):
            o = 56 + 4*kb
            a(f"""
            s_lshl_b32 s6, s47, 11
            s_add_u32 s6, s6, s61
            s_add_u32 s6, s6, {(112 + 32*part + kb)*1024}
            buffer_store_dwordx4 v[{o}:{o+3}], v14, s[20:23], s6 offen
            """)
        a("s_nop 1")
    a("s_endpgm")

if __name__ == "__main__":
    print(gen_kernel_b())
```

```python
from asmlib import *
from layout import *

def gen_kernel_d(P=10):
    a = Asm()
    a("""
    s_cmp_ge_u32 s2, 256
    s_cbranch_scc1 LD_done
    s_load_dwordx2 s[4:5], s[0:1], 120
    s_load_dwordx2 s[6:7], s[0:1], 0
    s_load_dwordx2 s[28:29], s[0:1], 104
    s_load_dwordx2 s[30:31], s[0:1], 64
    v_lshrrev_b32 v1, 6, v0
    v_and_b32 v0, 63, v0
    s_and_b32 s3, s2, 7
    s_lshr_b32 s27, s2, 3
    v_readfirstlane_b32 s26, v1
    """)
    a("""
    s_lshr_b32 s24, s3, 1
    s_lshl_b32 s24, s24, 3
    s_and_b32 s25, s27, 7
    s_add_u32 s24, s24, s25
    s_and_b32 s25, s3, 1
    s_lshl_b32 s25, s25, 2
    s_lshr_b32 s27, s27, 3
    s_add_u32 s25, s25, s27
    s_waitcnt lgkmcnt(0)
    s_mov_b32 s8, s4
    s_and_b32 s9, s5, 0xffff
    s_mov_b32 s10, %d
    s_mov_b32 s11, 0x20000
    s_mov_b32 s12, s6
    s_and_b32 s13, s7, 0xffff
    s_mov_b32 s14, %d
    s_mov_b32 s15, 0x20000
    s_mov_b32 s16, s28
    s_and_b32 s17, s29, 0xffff
    s_mov_b32 s18, %d
    s_mov_b32 s19, 0x20000
    s_mov_b32 s20, s30
    s_and_b32 s21, s31, 0xffff
    s_mov_b32 s22, 1024
    s_mov_b32 s23, 0x20000
    """ % (WS_END, L*D*2, L*D*4))
    a("""
    s_mul_i32 s32, s26, %d
    s_mul_i32 s33, s24, %d
    s_add_u32 s33, s33, s32
    s_mul_i32 s34, s25, %d
    s_add_u32 s34, s34, s32
    s_add_u32 s34, s34, %d
    v_lshlrev_b32 v2, 4, v0
    v_add_u32 v3, s33, v2
    v_add_u32 v4, %d, v3
    v_add_u32 v5, s34, v2
    v_add_u32 v6, %d, v5
    """ % (44*1024, 2*RB_STRIDE, 2*RB_STRIDE, WS_B, RB_STRIDE, RB_STRIDE))
    for q in range(11):
        a("s_mov_b32 s%d, %d" % (40+q, q*4096))
    FB = 64
    def frag(ks, st): return FB + (ks % P)*16 + st*4
    def issue(ks):
        for st in range(4):
            r = frag(ks, st)
            a.vmem("buffer_load_dwordx4 v[%d:%d], v%d, s[8:11], s%d offen offset:%d" % (r, r+3, 3+st, 40+ks//4, (ks%4)*1024), ("k", ks))
    for ks in range(min(P, 44)):
        issue(ks)
    a("""
    s_lshr_b32 s35, s26, 1
    s_and_b32 s36, s26, 1
    s_lshl_b32 s37, s24, 6
    s_lshl_b32 s35, s35, 5
    s_add_u32 s37, s37, s35
    s_lshl_b32 s38, s25, 6
    s_lshl_b32 s36, s36, 5
    s_add_u32 s38, s38, s36
    v_lshrrev_b32 v7, 5, v0
    v_lshlrev_b32 v7, 4, v7
    v_add_u32 v7, s37, v7
    v_and_b32 v8, 31, v0
    v_add_u32 v8, s38, v8
    v_lshlrev_b32 v9, 10, v7
    v_lshl_add_u32 v9, v8, 1, v9
    v_lshlrev_b32 v10, 1, v9
    v_lshlrev_b32 v11, 3, v7
    v_add_u32 v11, %d, v11
    v_lshlrev_b32 v12, 1, v8
    """ % WS_STATS)
    XR = 12+4
    for r in range(16):
        a.vmem("buffer_load_ushort v%d, v9, s[12:15], s%d offen offset:%d" % (XR+r, 40+r//4, (r%4)*1024), "ep")
    SR = 32
    for q in range(8):
        a.vmem("buffer_load_dwordx4 v[%d:%d], v11, s[8:11], 0 offen offset:%d" % (SR+4*q, SR+4*q+3, q*16), "ep")
    a.vmem("buffer_load_ushort v13, v12, s[20:23], 0 offen", "ep")
    for i in range(64):
        a("v_accvgpr_write_b32 a%d, 0" % i)
    for ks in range(44):
        a.vm_wait(("k", ks))
        A0, A1, B0, B1 = [frag(ks, st) for st in range(4)]
        for (ta, A) in ((0, A0), (1, A1)):
            for (tb, B) in ((0, B0), (1, B1)):
                t = (ta*2+tb)*16
                a("v_mfma_f32_32x32x16_bf16 a[%d:%d], v[%d:%d], v[%d:%d], a[%d:%d]" % (t, t+15, A, A+3, B, B+3, t, t+15))
        if ks + P < 44:
            issue(ks + P)
    a.nop(16)
    for i in range(64):
        a("v_accvgpr_read_b32 v%d, a%d" % (FB+i, i))
    a("""
    s_lshl_b32 s35, s26, 12
    v_lshlrev_b32 v14, 4, v0
    v_add_u32 v14, s35, v14
    """)
    for dest in range(4):
        for q in range(4):
            r = FB + dest*16 + q*4
            a("ds_write_b128 v14, v[%d:%d] offset:%d" % (r, r+3, dest*16384 + q*1024))
    a("s_waitcnt lgkmcnt(0)")
    a("s_barrier")
    a("""
    s_lshl_b32 s35, s26, 14
    v_lshlrev_b32 v15, 4, v0
    v_add_u32 v15, s35, v15
    """)
    for src in range(4):
        for q in range(4):
            r = FB + src*16 + q*4
            a("ds_read_b128 v[%d:%d], v15 offset:%d" % (r, r+3, src*4096 + q*1024))
    a("s_waitcnt vmcnt(0) lgkmcnt(0)")
    for r in range(16):
        a("v_add_f32 v%d, v%d, v%d" % (FB+r, FB+r, FB+16+r))
        a("v_add_f32 v%d, v%d, v%d" % (FB+32+r, FB+32+r, FB+48+r))
    for r in range(16):
        a("v_add_f32 v%d, v%d, v%d" % (FB+r, FB+r, FB+32+r))
    T = FB + 64
    a("v_lshlrev_b32 v13, 16, v13")
    for r in range(16):
        a("v_lshlrev_b32 v%d, 16, v%d" % (XR+r, XR+r))
    for r in range(0, 16, 2):
        m0, rs0, m1, rs1 = SR+2*r, SR+2*r+1, SR+2*r+2, SR+2*r+3
        t0, t1, t2 = T + (r%4)*2, T + (r%4)*2+1, T+8 + (r%4)
        a("v_sub_f32 v%d, v%d, v%d" % (t0, XR+r, m0))
        a("v_sub_f32 v%d, v%d, v%d" % (t1, XR+r+1, m1))
        a("v_cvt_pk_bf16_f32 v%d, v%d, v%d" % (t2, t0, t1))
        a("v_lshlrev_b32 v%d, 16, v%d" % (t0, t2))
        a("v_and_b32 v%d, 0xffff0000, v%d" % (t1, t2))
        a("v_mul_f32 v%d, v%d, v%d" % (t0, t0, rs0))
        a("v_mul_f32 v%d, v%d, v%d" % (t1, t1, rs1))
        a("v_cvt_pk_bf16_f32 v%d, v%d, v%d" % (t2, t0, t1))
        a("v_lshlrev_b32 v%d, 16, v%d" % (t0, t2))
        a("v_and_b32 v%d, 0xffff0000, v%d" % (t1, t2))
        a("v_mul_f32 v%d, v%d, v13" % (t0, t0))
        a("v_mul_f32 v%d, v%d, v13" % (t1, t1))
        a("v_cvt_pk_bf16_f32 v%d, v%d, v%d" % (t2, t0, t1))
        a("v_lshlrev_b32 v%d, 16, v%d" % (t0, t2))
        a("v_and_b32 v%d, 0xffff0000, v%d" % (t1, t2))
        a("v_add_f32 v%d, v%d, v%d" % (FB+r, FB+r, t0))
        a("v_add_f32 v%d, v%d, v%d" % (FB+r+1, FB+r+1, t1))
        a("v_add_f32 v%d, v%d, v%d" % (FB+r, FB+r, XR+r))
        a("v_add_f32 v%d, v%d, v%d" % (FB+r+1, FB+r+1, XR+r+1))
    for q in range(8):
        a("s_mov_b32 s%d, %d" % (52+q, q*4096))
    for r in range(16):
        a("buffer_store_dword v%d, v10, s[16:19], s%d offen offset:%d" % (FB+r, 52+r//2, (r%2)*2048))
    a.label("LD_done")
    a("s_endpgm")
    nv = FB + P*16
    nv = (nv + 7)//8*8
    return kernel_wrap("phase_d_kernel", a.text(), nv + 64, nv)

if __name__ == "__main__":
    print(gen_kernel_d())
```

```python
import numpy as np
L=2048; D=512; P=512; F=1792
NKS = 176
RB_STRIDE = NKS*1024
WS_A = 0
WS_B = 64*RB_STRIDE
WS_STATS = WS_B + 16*RB_STRIDE
WS_E = WS_STATS + 2048*8
WS_END = WS_E + 16*512*8
def tau(i): return ((i>>2)&1)*16 + (i>>3)*4 + (i&3)
def kmap(ks):
    out = np.zeros((2,8), dtype=np.int64)
    for hh in range(2):
        for j in range(8):
            if ks < 112: out[hh,j] = 16*ks + (j&3) + 8*(j>>2) + 4*hh
            else: out[hh,j] = 16*((ks-112)%32) + 8*hh + j
    return out
```

```python
import sys; sys.path.insert(0, "dev")
from gen_b import gen_kernel_b, LDS_B
from gen_d import gen_kernel_d
ref = open("parallel_sum__ssm_conv_s5__glu_gated_swiglu__prompt.s.ref").read().split("\n")
hdr = [l for l in ref if l.startswith(";") and "@launch" not in l and "Override launch" not in l and "grid=ceil" not in l]
hdr = hdr[:17]
out = "\n".join(hdr) + "\n"
out += f"; @launch kernel=phase_b_kernel grid=(256,1,1) block=(512,1,1) lds={LDS_B}\n"
out += f"; @launch kernel=phase_d_kernel grid=(256,1,1) block=(256,1,1) lds=65536\n"
out += '.amdgcn_target "amdgcn-amd-amdhsa--gfx950"\n'
out += gen_kernel_b() + gen_kernel_d()
dst = sys.argv[1] if len(sys.argv) > 1 else "parallel_sum__ssm_conv_s5__glu_gated_swiglu__prompt.s"
open(dst, "w").write(out)
print("wrote", dst, len(out))
```
